```python
import torch

def _softmax(x, axis=-1):
    return torch.softmax(x, dim=axis)
def _gelu(x):
    return torch.nn.functional.gelu(x, approximate="tanh")
def _silu(x):
    return torch.nn.functional.silu(x)
def _sigmoid(x):
    return torch.sigmoid(x)
def _layernorm(x, axis=-1, eps=1e-5):
    m = x.mean(dim=axis, keepdim=True)
    v = x.var(dim=axis, keepdim=True, unbiased=False)
    return (x - m) / torch.sqrt(v + eps)
def _scatter_add(tgt, idx, src, axis=0):
    return tgt.clone().index_add_(axis, idx, src)
def _segment_sum(src, seg, n):
    out = torch.zeros((n,) + src.shape[1:], dtype=src.dtype)
    return out.index_add_(0, seg, src)
def _pad(x, pw):
    flat = tuple(v for pair in reversed(pw) for v in pair)
    return torch.nn.functional.pad(x, flat)

kernel_name = 'recurrent_scan__sliding_block_cached__swiglu_ffn__prompt'

def setup_inputs():

    _w = (lambda a: (lambda t: t.to(torch.bfloat16) if t.is_floating_point() else t)(torch.as_tensor(a)))
    def _A_setup():
        B, Sq, D = 1, 2048, 640
        Hq, Hkv, Sk, Dh = 32, 32, 2048, 192
        assert Hq % Hkv == 0, (Hq, Hkv)
        return {
            "x": _w((lambda *s: torch.randn(*s, dtype=torch.bfloat16) * 0.05)(B, Sq, D)),
            "k_cache": _w((lambda *s: torch.randn(*s, dtype=torch.bfloat16) * 0.8)(B, Hkv, Sk, Dh)),
            "v_cache": _w((lambda *s: torch.randn(*s, dtype=torch.bfloat16) * 0.2)(B, Hkv, Sk, Dh)),
            "wq": _w((lambda *s: torch.randn(*s, dtype=torch.bfloat16) * 0.8)(D, Hq * Dh) * (D ** -0.5)),
            "wo": _w((lambda *s: torch.randn(*s, dtype=torch.bfloat16) * 0.2)(Hq * Dh, D) * ((Hq * Dh) ** -0.5)),
        }
    _A_in = _A_setup()

    def _B_setup():
        B, S, D, F = 1, 2048, 640, 1536
        return {
            "x": _w((lambda *s: torch.randn(*s, dtype=torch.bfloat16) * 0.05)(B, S, D)),
            "w_gate": _w((lambda *s: torch.randn(*s, dtype=torch.bfloat16) * 0.1)(D, F)),
            "w_up": _w((lambda *s: torch.randn(*s, dtype=torch.bfloat16) * 0.1)(D, F)),
            "w_down": _w((lambda *s: torch.randn(*s, dtype=torch.bfloat16) * 0.1)(F, D)),
        }
    _B_in = _B_setup()

    return {
        "A_x": _A_in["x"],
        "A_k_cache": _A_in["k_cache"],
        "A_v_cache": _A_in["v_cache"],
        "A_wq": _A_in["wq"],
        "A_wo": _A_in["wo"],
        "B_x": _B_in["x"],
        "B_w_gate": _B_in["w_gate"],
        "B_w_up": _B_in["w_up"],
        "B_w_down": _B_in["w_down"],
    }

def reference(A_x, A_k_cache, A_v_cache, A_wq, A_wo, B_x, B_w_gate, B_w_up, B_w_down):
    def _A_ref(x, k_cache, v_cache, wq, wo):
        B, Sq, D = x.shape
        Hq, Dh = 32, 192
        Hkv, Sk = k_cache.shape[1], k_cache.shape[2]
        W = min(4096, max(256, Sk // 4))
        rep = Hq // Hkv
        q = (lambda x, *d: x.permute(*d))((x @ wq).reshape(B, Sq, Hq, Dh), 0, 2, 1, 3)
        k = (lambda x, n, axis: torch.repeat_interleave(x, n, dim=axis))(k_cache[:, :, Sk - W:, :], rep, axis=1)
        v = (lambda x, n, axis: torch.repeat_interleave(x, n, dim=axis))(v_cache[:, :, Sk - W:, :], rep, axis=1)
        scores = torch.einsum("bhqd,bhkd->bhqk", q, k) * (Dh ** -0.5)
        p = _softmax(scores, axis=-1)
        o = torch.einsum("bhqk,bhkd->bhqd", p, v)
        return (lambda x, *d: x.permute(*d))(o, 0, 2, 1, 3).reshape(B, Sq, Hq * Dh) @ wo

    def _B_ref(x, w_gate, w_up, w_down):
        g = _silu(x @ w_gate)
        u = x @ w_up
        return (g * u) @ w_down

    x = A_x
    xn = _layernorm(x, axis=-1)
    s = _A_ref(xn, A_k_cache, A_v_cache, A_wq, A_wo)
    g = _silu(_B_ref(xn, B_w_gate, B_w_up, B_w_down))
    return x + s * g
```

```python
import re, sys

REG_RE = re.compile(r'^(-|abs\(|\|)?([vas])(?:(\d+)|\[(\d+):(\d+)\])\)?\|?$')
TRANS = ('v_exp_f32', 'v_log_f32', 'v_rcp_f32', 'v_rsq_f32', 'v_sqrt_f32', 'v_sin_f32', 'v_cos_f32')

def regs_of(tok):
    tok = tok.strip()
    m = REG_RE.match(tok)
    if m:
        f = m.group(2)
        if m.group(3) is not None:
            return [f + m.group(3)]
        return [f + str(i) for i in range(int(m.group(4)), int(m.group(5)) + 1)]
    if tok in ('vcc', 'vcc_lo', 'vcc_hi'): return ['vcc']
    if tok in ('exec', 'exec_lo', 'exec_hi'): return ['exec']
    if tok == 'm0': return ['m0']
    return []

class Ins:
    __slots__ = ('text', 'op', 'kind', 'rd', 'wr', 'ops', 'ldsr', 'ldsw', 'tag', 'need', 'dpp', 'cregs', 'abregs', 'nohoist', 'm0')
    def __init__(self, text, ldsr=None, ldsw=None, tag=None, need=None, nohoist=False, m0=None):
        self.m0 = m0
        self.text = text.strip()
        self.ldsr = ldsr; self.ldsw = ldsw; self.tag = tag; self.need = need; self.nohoist = nohoist
        self.dpp = False; self.cregs = []; self.abregs = []
        t = self.text.split(';')[0].strip()
        if need is not None:
            self.op = 'need'; self.kind = 'need'; self.wr = []; self.ops = []
            self.rd = [r for tok in t.split() for r in regs_of(tok)]; return
        if t.endswith(':') or t.startswith('.') or t == '':
            self.op = t; self.kind = 'label'; self.rd = []; self.wr = []; self.ops = []; return
        sp = t.split(None, 1)
        op = sp[0]; self.op = op
        rest = sp[1] if len(sp) > 1 else ''
        parts = [p.strip() for p in rest.split(',')] if rest else []
        mods = ''
        if parts:
            q = parts[-1].split(None, 1)
            parts[-1] = q[0]
            if len(q) > 1: mods = q[1]
        ops = []
        for p in parts:
            p0 = p.split(None, 1)
            ops.append(p0[0] if p0 else '')
            if len(p0) > 1: mods += ' ' + p0[1]
        self.ops = ops
        R = [regs_of(o) for o in ops]
        flat = lambda l: [x for y in l for x in y]
        rd, wr = [], []
        base = re.sub(r'_(e32|e64|dpp|sdwa)$', '', op)
        if op.startswith('v_mfma'):
            k = 'mfma'; wr = R[0]; rd = flat(R[1:]); self.cregs = R[3]; self.abregs = R[1] + R[2]
        elif op.startswith('ds_read'):
            k = 'dsr'; wr = R[0]; rd = flat(R[1:])
        elif op.startswith('ds_bpermute') or op.startswith('ds_swizzle') or op.startswith('ds_permute'):
            k = 'dsr'; wr = R[0]; rd = flat(R[1:])
        elif op.startswith('ds_write') or op.startswith('ds_add') or op.startswith('ds_or'):
            k = 'dsw'; rd = flat(R)
        elif op.startswith('buffer_load') or op.startswith('global_load'):
            if re.search(r'\blds\b', t) or '_lds_' in op:
                k = 'dma'; rd = flat(R) + ['m0']
            else:
                k = 'vld'; wr = R[0]; rd = flat(R[1:])
        elif op.startswith('buffer_store') or op.startswith('global_store'):
            k = 'vst'; rd = flat(R)
        elif op.startswith('buffer_atomic') or op.startswith('global_atomic'):
            if re.search(r'\bsc0\b', t): k = 'vld'; wr = R[0]; rd = flat(R)
            else: k = 'vst'; rd = flat(R)
        elif op.startswith('buffer_wbl2') or op.startswith('buffer_inv'):
            k = 'vst'
        elif op.startswith('s_load') or op in ('s_memtime', 's_memrealtime'):
            k = 'smem'; wr = R[0]; rd = flat(R[1:])
        elif op == 's_waitcnt': k = 'wait'
        elif op == 's_barrier': k = 'bar'
        elif op == 's_nop': k = 'nop'
        elif op in ('s_endpgm', 's_setprio', 's_sleep'): k = 'salu'
        elif op.startswith('s_branch') or op.startswith('s_cbranch'):
            k = 'branch'
            if 'vcc' in op: rd = ['vcc']
            if 'exec' in op: rd = ['exec']
        elif op.startswith('s_cmp') or op.startswith('s_bitcmp'):
            k = 'salu'; rd = flat(R)
        elif op.startswith('s_'):
            k = 'salu'; wr = list(R[0]); rd = flat(R[1:])
            if 'saveexec' in op: wr.append('exec'); rd.append('exec')
            if op in ('s_addk_i32', 's_mulk_i32'): rd += R[0]
        elif op.startswith('v_'):
            k = 'trans' if base in TRANS else 'valu'
            if 'permlane' in op and 'swap' in op:
                wr = R[0] + R[1]; rd = R[0] + R[1]
            elif base.startswith('v_cmp'):
                wr = list(R[0]); rd = flat(R[1:])
                if base.startswith('v_cmpx'): wr.append('exec')
            elif '_co_' in base:
                wr = R[0] + R[1]; rd = flat(R[2:])
            elif base in ('v_fmac_f32', 'v_pk_fmac_f16', 'v_dot2c_f32_bf16', 'v_writelane_b32'):
                wr = R[0]; rd = flat(R)
            elif base == 'v_nop': pass
            else:
                wr = R[0]; rd = flat(R[1:])
            if re.search(r'quad_perm|row_shl|row_shr|row_ror|row_mirror|row_half_mirror|row_bcast|wave_|row_newbcast', t):
                self.dpp = True; rd = rd + R[0]
        else:
            raise ValueError('unknown instruction: ' + text)
        self.kind = k; self.rd = rd; self.wr = wr

    def states(self):
        if self.kind in ('label', 'need'): return 0
        if self.kind == 'nop': return int(self.ops[0], 0) + 1
        return 1

def parse_wait(ins):
    vm = re.search(r'vmcnt\((\d+)\)', ins.text); lg = re.search(r'lgkmcnt\((\d+)\)', ins.text)
    return (int(vm.group(1)) if vm else None, int(lg.group(1)) if lg else None)

class Seg:
    def __init__(self, name, it=0, loop=False):
        self.name = name; self.it = it; self.loop = loop; self.ins = []

class Stream:
    def __init__(self):
        self.slots = []; self.marks = {}
    def n(self): return len(self.slots)
    def mark(self, name, it=0, loop=False):
        assert self.n() not in self.marks, (name, self.marks[self.n()])
        self.marks[self.n()] = (name, it, loop)
    def mfma(self, text):
        self.slots.append(dict(m=Ins(text), sc=[], fl=[], end=[])); return self.n() - 1
    def plain(self, *texts, **kw):
        s = dict(m=None, sc=[], fl=[], end=[])
        for t in texts:
            if isinstance(t, Ins): s['fl'].append(t)
            else:
                for l in t.split('\n'):
                    if l.strip(): s['fl'].append(Ins(l, **kw))
        self.slots.append(s); return self.n() - 1
    def put(self, g, text, **kw):
        i = text if isinstance(text, Ins) else Ins(text, **kw)
        self.slots[g]['fl'].append(i); return i
    def putf(self, g, text, **kw):
        i = text if isinstance(text, Ins) else Ins(text, **kw)
        self.slots[g]['fl'].insert(0, i); return i
    def puts(self, g, text, **kw):
        i = text if isinstance(text, Ins) else Ins(text, **kw)
        self.slots[g]['sc'].append(i); return i
    def pute(self, g, text, **kw):
        i = text if isinstance(text, Ins) else Ins(text, **kw)
        self.slots[g]['end'].append(i); return i
    def cost(self, g):
        s = self.slots[g]; c = 0
        sc = [i for i in s['sc']]
        c += max(0, len(sc) - 1)
        prev_valu = False
        for i in s['fl'] + s['end']:
            if i.kind in ('label',): continue
            if i.kind == 'trans': c += 2; prev_valu = True
            elif i.kind == 'valu': c += 1; prev_valu = True
            elif i.kind in ('dsr', 'dsw'): c += 3 if prev_valu else 1; prev_valu = False
            elif i.kind in ('vld', 'vst', 'dma'): c += 4 if prev_valu else 2; prev_valu = False
            else: c += 1
        return c
    def free(self, g): return 2 - self.cost(g)
    def segments(self):
        segs = []; cur = None
        for g, s in enumerate(self.slots):
            if g in self.marks:
                cur = Seg(*self.marks[g]); segs.append(cur)
            assert cur is not None
            if s['m'] is not None: cur.ins.append(s['m'])
            cur.ins += s['sc'] + s['fl'] + s['end']
        return segs

class Kernel:
    def __init__(self, name, segs, shared_lds=True, verbose=True):
        self.name = name; self.segs = segs; self.verbose = verbose
        self.waits = {}; self.nops = {}
        first = {}
        for s in segs:
            if s.name in first:
                a = first[s.name]
                assert s.loop, 'duplicate segment name ' + s.name
                assert len(a.ins) == len(s.ins), (s.name, s.it, len(a.ins), len(s.ins))
                for x, y in zip(a.ins, s.ins):
                    assert x.text == y.text, (s.name, s.it, x.text, y.text)
            else: first[s.name] = s
        self.first = first

    def trace(self):
        out = []
        for s in self.segs:
            for i, x in enumerate(s.ins):
                k = (s.name, i)
                if k in self.waits:
                    vm, lg = self.waits[k]
                    t = 's_waitcnt' + (f' vmcnt({vm})' if vm is not None else '') + (f' lgkmcnt({lg})' if lg is not None else '')
                    out.append((None, Ins(t)))
                if k in self.nops:
                    n = self.nops[k]
                    while n > 0:
                        m = min(n, 16); out.append((None, Ins(f's_nop {m-1}'))); n -= m
                out.append((k, x))
        return out

    def insert_waits(self):
        for rnd in range(200000):
            if not self._wait_pass(): return
        raise RuntimeError('wait insertion did not converge')

    def _wait_pass(self):
        tr = self.trace()
        vmq = []; lgq = []
        nvm = 0; nlg = 0
        changed = False; start = dict(self.waits)
        hoist = None; after_mfma = False
        for key, x in tr:
            if key is not None and after_mfma:
                hoist = (key, nvm, nlg); after_mfma = False
            if x.kind in ('branch', 'label'):
                hoist = None
            if x.kind == 'wait':
                vm, lg = parse_wait(x)
                if vm is not None: vmq = vmq[len(vmq) - vm:] if vm < len(vmq) else vmq
                if vm == 0: vmq = []
                if lg is not None:
                    if lg == 0: lgq = []
                    elif not any(o[1].kind == 'smem' for o in lgq):
                        lgq = lgq[len(lgq) - lg:] if lg < len(lgq) else lgq
                continue
            touched = set(x.rd) | set(x.wr)
            nv = None; nl = None
            for n, o in vmq:
                if (touched & set(o.wr)) or (x.need is not None and o.tag in x.need):
                    if x.kind == 'vld' and not (set(x.rd) & set(o.wr)): continue
                    nv = n
            for n, o in lgq:
                if (touched & set(o.wr)) or (x.need is not None and o.tag in x.need):
                    if x.kind == 'dsr' and o.kind == 'dsr' and not (set(x.rd) & set(o.wr)): continue
                    nl = n
            if nv is not None or nl is not None:
                k2, cv, cl = key, nvm, nlg
                if hoist is not None and not x.nohoist and (nv is None or nv < hoist[1]) and (nl is None or nl < hoist[2]):
                    k2, cv, cl = hoist
                old = self.waits.get(k2, (None, None))
                w_vm, w_lg = old
                if nv is not None:
                    c = min(cv - nv - 1, 63); w_vm = c if w_vm is None else min(w_vm, c)
                    vmq = [e for e in vmq if e[0] > nv]
                if nl is not None:
                    c = min(cl - nl - 1, 15)
                    if any(o[1].kind == 'smem' for o in lgq): c = 0
                    w_lg = c if w_lg is None else min(w_lg, c)
                    lgq = [e for e in lgq if e[0] > nl]
                if (w_vm, w_lg) != old:
                    self.waits[k2] = (w_vm, w_lg); changed = True
                elif start.get(k2) == old:
                    raise RuntimeError(f'wait stuck at {key} {x.text}')
            if x.kind in ('vld', 'vst', 'dma'): vmq.append((nvm, x)); nvm += 1
            if x.kind in ('dsr', 'dsw', 'smem'): lgq.append((nlg, x)); nlg += 1
            if x.kind == 'mfma': after_mfma = True
        return changed

    def fix_hazards(self):
        for rnd in range(1000):
            if not self._haz_pass(): return
        raise RuntimeError('hazard fixing did not converge')

    @staticmethod
    def need_states(p, c):
        need = 0
        pw = set(p.wr); cr = set(c.rd); cw = set(c.wr)
        pv = p.kind in ('valu', 'trans'); cv = c.kind in ('valu', 'trans')
        vec = lambda s: {r for r in s if r[0] in 'va' and r != 'vcc'}
        sg = lambda s: {r for r in s if r[0] == 's' or r == 'vcc'}
        if pv:
            if c.kind == 'mfma' and vec(pw) & cr: need = max(need, 2)
            if c.kind == 'mfma' and 'exec' in pw: need = max(need, 4)
            if cv and 'permlane' in c.op and vec(pw) & cr: need = max(need, 2)
            if cv and c.dpp and vec(pw) & cr: need = max(need, 2)
            if cv and ('readfirstlane' in c.op or 'readlane' in c.op) and vec(pw) & cr: need = max(need, 1)
            if c.kind in ('vld', 'vst', 'dma') and sg(pw) & cr: need = max(need, 5)
            if cv and sg(pw) & cr:
                need = max(need, 4 if ('readlane' in c.op or 'writelane' in c.op) else 2)
            if cv and 'exec' in pw and (c.dpp or 'permlane' in c.op or 'lane' in c.op): need = max(need, 5)
            if p.kind == 'trans' and cv and vec(pw) & cr: need = max(need, 1)
            if p.kind == 'trans' and c.kind in ('vst', 'dsw', 'dsr', 'vld', 'dma') and vec(pw) & cr: need = max(need, 1)
            if ('op_sel' in p.text or 'sdwa' in p.op) and cv and vec(pw) & (cr | cw): need = max(need, 1)
        if p.kind == 'mfma':
            big = '32x32' in p.op
            if c.kind == 'mfma':
                if pw & set(c.abregs): need = max(need, 12 if big else 8)
                if pw & set(c.cregs) and p.wr != c.cregs: need = max(need, 10 if big else 6)
                if pw & cw and p.wr != c.wr: need = max(need, 10 if big else 6)
            elif cv:
                if pw & (cr | cw): need = max(need, 12 if big else 8)
                if set(p.cregs) & cw: need = max(need, 7 if big else 3)
            elif c.kind in ('vld', 'vst', 'dma', 'dsr', 'dsw'):
                if pw & (cr | cw): need = max(need, 12 if big else 8)
                if set(p.cregs) & cw: need = max(need, 7 if big else 3)
        if p.kind == 'salu' and 'm0' in pw and c.kind == 'dma': need = max(need, 1)
        if p.kind == 'vst' and ('x4' in p.op or 'x3' in p.op):
            data = set(regs_of(p.ops[0])) if p.op.startswith('buffer') else set(regs_of(p.ops[1]))
            if data & cw: need = max(need, 2)
        return need

    def _haz_pass(self):
        tr = self.trace(); newn = {}
        hist = []
        for key, x in tr:
            if x.kind in ('label', 'need'): continue
            if x.kind not in ('nop', 'wait', 'salu', 'branch', 'bar', 'smem'):
                d = 0; extra = 0
                for p in reversed(hist):
                    if d >= 12: break
                    if p.kind in ('valu', 'trans', 'mfma', 'salu', 'vst'):
                        n = self.need_states(p, x)
                        if n > d: extra = max(extra, n - d)
                    d += p.states()
                if extra:
                    newn[key] = max(newn.get(key, 0), extra)
                    hist.append(Ins(f's_nop {extra-1}'))
            hist.append(x)
            if len(hist) > 40: hist = hist[-20:]
        for k, n in newn.items(): self.nops[k] = self.nops.get(k, 0) + n
        return bool(newn)

    def check_lds(self):
        tr = self.trace()
        vmq = []; lgq = []; nbar = 0
        cur = {}
        reads = {}
        errs = []; lastm0 = None; lastscc = None; prev = None
        for key, x in tr:
            if x.kind == 'wait':
                vm, lg = parse_wait(x)
                if vm is not None:
                    while len(vmq) > vm: vmq.pop(0)['done'] = nbar
                if lg is not None:
                    while len(lgq) > lg: lgq.pop(0)['done'] = nbar
                continue
            if x.kind == 'bar': nbar += 1; continue
            rec = dict(done=None, ins=x)
            if 'm0' in x.wr: lastm0 = x.text
            if x.kind == 'salu' and not re.match(r's_(mov|movk|mul_|cselect|nop|setprio|sleep|getpc|getreg|endpgm|mulk)', x.op): lastscc = x
            if (x.op.startswith('s_cbranch_scc') or x.op.startswith('s_cselect')) and not re.match(r's_(cmp|bitcmp|or_b64|and_b64)', lastscc.op):
                errs.append(f'SCC source suspicious at {key}: {lastscc.text} -> {x.text}')
            if x.op.startswith('s_addc') and not prev.op.startswith('s_add_u32'): errs.append(f'addc at {key}')
            prev = x
            if x.m0 is not None and x.m0 != lastm0: errs.append(f'M0 mismatch at {key}: {x.text} wants {x.m0} has {lastm0}')
            if x.ldsw is not None:
                regs_, data, shared = x.ldsw
                for reg in (regs_ if isinstance(regs_, list) else [regs_]):
                    for r in reads.get(reg, []):
                        if r['done'] is None or (shared and r['done'] >= nbar):
                            errs.append(f'WAR {reg} data {data}: {x.text} vs {r["ins"].text} at {key}'); break
                    c = cur.get(reg)
                    if c is None or c['data'] != data:
                        if c is not None:
                            for w in c['w']:
                                if w['done'] is None or (shared and w['done'] >= nbar):
                                    errs.append(f'WAW {reg} data {data} over {c["data"]} at {key}'); break
                        c = cur[reg] = dict(data=data, w=[]); reads[reg] = []
                    c['w'].append(rec)
            if x.ldsr is not None:
                reg, data, shared = x.ldsr
                c = cur.get(reg)
                if c is None or c['data'] != data:
                    errs.append(f'RAW {reg}: wants {data}, holds {c and c["data"]} at {key} {x.text}')
                else:
                    for w in c['w']:
                        if w['done'] is None or (shared and w['done'] >= nbar):
                            errs.append(f'RAW {reg} data {data} not visible at {key} {x.text}'); break
                reads.setdefault(reg, []).append(rec)
            if x.kind in ('vld', 'vst', 'dma'): vmq.append(rec)
            if x.kind in ('dsr', 'dsw', 'smem'): lgq.append(rec)
        if errs:
            for e in errs[:20]: print('LDS CHECK:', e)
            raise RuntimeError(f'{len(errs)} LDS protocol errors in {self.name}')

    def finalize(self):
        self.insert_waits(); self.fix_hazards(); self.insert_waits()
        self.check_lds()
        lines = []
        done = set()
        for s in self.segs:
            if s.name in done: continue
            done.add(s.name)
            for i, x in enumerate(s.ins):
                k = (s.name, i)
                if k in self.waits:
                    vm, lg = self.waits[k]
                    lines.append('s_waitcnt' + (f' vmcnt({vm})' if vm is not None else '') + (f' lgkmcnt({lg})' if lg is not None else ''))
                if k in self.nops:
                    n = self.nops[k]
                    while n > 0:
                        m = min(n, 16); lines.append(f's_nop {m-1}'); n -= m
                if x.kind != 'need': lines.append(x.text)
        if self.verbose:
            per = {}
            for (nm, i), n in self.nops.items(): per.setdefault(nm, []).append((i, n))
            for nm, l in per.items():
                print(f'[{self.name}] nops in {nm}: {len(l)} sites, {sum(n for _, n in l)} states', file=sys.stderr)
        return lines

    def gap_report(self):
        tr = self.trace()
        per = {}; seg = None
        slots = 0; inmf = False; first = False; prev_valu = False
        def flush():
            nonlocal slots
            r = per.setdefault(seg, [0, 0, 0])
            if inmf:
                r[0] += 1; r[1] += max(4, 2 + slots) * 4
                if slots > 2: r[2] += 1
            else: r[1] += slots * 4
            slots = 0
        for key, x in tr:
            if key is not None and key[0] != seg:
                if seg is not None: flush(); inmf = False
                seg = key[0]
            if x.kind in ('label', 'need'): continue
            if x.kind == 'mfma':
                flush(); inmf = True; first = True; prev_valu = False; continue
            if x.kind in ('salu', 'wait', 'branch', 'smem'):
                if not (inmf and first): slots += 1
            elif x.kind == 'nop': slots += x.states() - (1 if (inmf and first) else 0)
            elif x.kind == 'bar': slots += 2
            elif x.kind == 'trans': slots += 2
            elif x.kind == 'valu': slots += 1
            elif x.kind in ('dsr', 'dsw'): slots += 3 if prev_valu else 1
            else: slots += 4 if prev_valu else 2
            prev_valu = x.kind in ('valu', 'trans'); first = False
        flush()
        tot = 0
        for s, r in per.items():
            print(f'[{self.name}] seg {s:10s} mfma {r[0]:5d} est cycles {r[1]:6d} overfull gaps {r[2]}', file=sys.stderr); tot += r[1]
        print(f'[{self.name}] total est cycles {tot}', file=sys.stderr)

def kernel_text(name, lines, vgpr=512, accum=256, sgpr=102):
    head = f'.text\n.globl {name}\n.p2align 8\n.type {name},@function\n{name}:\n'
    return head + '\n'.join(lines) + '\n'

def kernel_desc(name, vgpr=512, accum=256, sgpr=102):
    return (f'.section .rodata,"a"\n.p2align 6\n.amdhsa_kernel {name}\n'
            f'  .amdhsa_next_free_vgpr {vgpr}\n  .amdhsa_next_free_sgpr {sgpr}\n  .amdhsa_accum_offset {accum}\n'
            '  .amdhsa_group_segment_fixed_size 0\n  .amdhsa_kernarg_size 96\n  .amdhsa_user_sgpr_count 2\n'
            '  .amdhsa_user_sgpr_kernarg_segment_ptr 1\n  .amdhsa_system_sgpr_workgroup_id_x 1\n.end_amdhsa_kernel\n')

def vr(b, n=4, f='v'): return f'{f}[{b}:{b+n-1}]' if n > 1 else f'{f}{b}'
def ar(b, n=4): return vr(b, n, 'a')
def sr(b, n=4): return vr(b, n, 's')
import struct
def fbits(x): return '0x%08x' % struct.unpack('<I', struct.pack('<f', x))[0]
```

```python
import sys, math
from asmlib import *

WS_XN = 0; WS_H = 0x400000; WS_O = 0x1000000; WS_SP = 0x3000000
WS_SIZE = 0x10000000
CQ = math.log2(math.e) / math.sqrt(192.0)
OOB = 0x7ff00000
MF = 'v_mfma_f32_16x16x32_bf16'

def off(n): return f' offset:{n}' if n else ''

def srd(S, dst, src, size):
    S.append(f's_mov_b32 s{dst}, s{src}\ns_mov_b32 s{dst+1}, s{src+1}\ns_mov_b32 s{dst+2}, {size}\ns_mov_b32 s{dst+3}, 0x20000')

def xlane_sum(v, t, op='v_add_f32'):
    return [f'v_mov_b32 v{t}, v{v}', f'v_permlane16_swap_b32 v{t}, v{v}', f'{op} v{v}, v{t}, v{v}',
            f'v_mov_b32 v{t}, v{v}', f'v_permlane32_swap_b32 v{t}, v{v}', f'{op} v{v}, v{t}, v{v}']

def gen_k0(name='ln_kernel'):
    st = Stream(); st.mark('k0')
    S = []
    A = S.append
    A('s_cmp_ge_u32 s2, 256\ns_cbranch_scc1 L_k0_end')
    A('s_load_dwordx2 s[4:5], s[0:1], 0\ns_load_dwordx2 s[6:7], s[0:1], 88')
    A('v_lshrrev_b32 v1, 6, v0\nv_and_b32 v2, 7, v0\nv_bfe_u32 v3, v0, 3, 3')
    A('v_readfirstlane_b32 s3, v1')
    A('s_mul_i32 s16, s2, 10240')
    A('v_mul_u32_u24 v4, 1280, v2\nv_lshrrev_b32 v5, 3, v0\nv_lshl_add_u32 v4, v5, 4, v4')
    A('s_cmp_lt_u32 s3, 2')
    A(f's_cselect_b32 s17, 0, {OOB}\ns_cselect_b32 s18, 1.0, 0')
    A('s_add_u32 s19, s16, s17')
    srd(S, 8, 4, 2048 * 1280); srd(S, 12, 6, WS_SIZE)
    A('buffer_load_dwordx4 v[8:11], v4, s[8:11], s16 offen')
    A('buffer_load_dwordx4 v[12:15], v4, s[8:11], s16 offen offset:512')
    A('buffer_load_dwordx4 v[16:19], v4, s[8:11], s19 offen offset:1024')
    A('s_lshr_b32 s20, s2, 3\ns_mul_i32 s20, s20, 81920')
    A('s_bfe_u32 s21, s2, 0x20001\ns_lshl_b32 s21, s21, 10\ns_add_u32 s20, s20, s21')
    A('s_and_b32 s21, s2, 1\ns_lshl_b32 s21, s21, 7\ns_add_u32 s20, s20, s21')
    A('s_lshl_b32 s21, s3, 13\ns_add_u32 s20, s20, s21')
    A(f's_add_u32 s20, s20, {WS_XN}')
    A('s_add_u32 s22, s20, 32768\ns_add_u32 s23, s20, 65536\ns_add_u32 s23, s23, s17')
    A('v_lshrrev_b32 v5, 2, v3\nv_lshlrev_b32 v5, 12, v5\nv_and_b32 v6, 3, v3\nv_lshl_add_u32 v5, v6, 8, v5\nv_lshl_add_u32 v5, v2, 4, v5')
    A('v_lshlrev_b32 v6, 4, v2\nv_lshl_add_u32 v7, v1, 2, v6')
    X = 24
    for i in range(12):
        A(f'v_lshlrev_b32 v{X+2*i}, 16, v{8+i}\nv_and_b32 v{X+2*i+1}, 0xffff0000, v{8+i}')
    A(f'v_pk_add_f32 v[20:21], v[{X}:{X+1}], v[{X+2}:{X+3}]')
    for i in range(2, 12): A(f'v_pk_add_f32 v[20:21], v[20:21], v[{X+2*i}:{X+2*i+1}]')
    def reduce(off):
        A('v_add_f32 v20, v20, v21')
        A('v_add_f32_dpp v20, v20, v20 row_ror:8 row_mask:0xf bank_mask:0xf')
        for l in xlane_sum(20, 21): A(l)
        A(f'ds_write_b32 v7, v20 offset:{off}\ns_waitcnt lgkmcnt(0)\ns_barrier')
        A(f'ds_read_b128 v[48:51], v6 offset:{off}')
        A('v_pk_add_f32 v[20:21], v[48:49], v[50:51]\nv_add_f32 v20, v20, v21')
        A(f'v_mul_f32 v20, {fbits(1.0/640)}, v20')
    reduce(0)
    A('v_mov_b32 v52, v20\nv_mov_b32 v53, v20\nv_mul_f32 v54, s18, v20\nv_mul_f32 v55, s18, v20')
    A('v_cvt_pk_bf16_f32 v56, v20, v20\nv_and_b32 v56, 0xffff0000, v56\nv_mov_b32 v57, v56')
    for i in range(12):
        m = 52 if i < 8 else 54
        A(f'v_pk_add_f32 v[22:23], v[{X+2*i}:{X+2*i+1}], v[{m}:{m+1}] neg_lo:[0,1] neg_hi:[0,1]')
        if i == 0: A('v_pk_mul_f32 v[20:21], v[22:23], v[22:23]')
        else: A('v_pk_fma_f32 v[20:21], v[22:23], v[22:23], v[20:21]')
    for i in range(12):
        A(f'v_pk_add_f32 v[{X+2*i}:{X+2*i+1}], v[{X+2*i}:{X+2*i+1}], v[56:57] neg_lo:[0,1] neg_hi:[0,1]')
        A(f'v_cvt_pk_bf16_f32 v{8+i}, v{X+2*i}, v{X+2*i+1}')
        A(f'v_lshlrev_b32 v{X+2*i}, 16, v{8+i}\nv_and_b32 v{X+2*i+1}, 0xffff0000, v{8+i}')
    reduce(128)
    rnd = lambda r: A(f'v_cvt_pk_bf16_f32 v{r}, v{r}, v{r}\nv_and_b32 v{r}, 0xffff0000, v{r}')
    rnd(20); A(f'v_add_f32 v20, {fbits(1e-5)}, v20'); rnd(20); A('v_sqrt_f32 v20, v20'); rnd(20)
    A(f'v_rcp_f32 v20, v20\nv_mul_f32 v20, {fbits(CQ)}, v20\nv_mov_b32 v21, v20')
    for i in range(12):
        A(f'v_pk_mul_f32 v[{X+2*i}:{X+2*i+1}], v[{X+2*i}:{X+2*i+1}], v[20:21]')
        A(f'v_cvt_pk_bf16_f32 v{8+i}, v{X+2*i}, v{X+2*i+1}')
        if i == 3: A('buffer_store_dwordx4 v[8:11], v5, s[12:15], s20 offen')
        if i == 7: A('buffer_store_dwordx4 v[12:15], v5, s[12:15], s22 offen')
        if i == 11: A('buffer_store_dwordx4 v[16:19], v5, s[12:15], s23 offen')
    A('L_k0_end:\ns_endpgm')
    st.plain(*S)
    k = Kernel(name, st.segments())
    return kernel_text(name, k.finalize()), kernel_desc(name, vgpr=64, accum=64), f'; @launch kernel={name} grid=(256,1,1) block=(256,1,1) lds=256'

sWQ, sWG, sWU, sK, sV, sWS = 8, 12, 16, 20, 24, 28
sW, sH, sQG = 32, 33, 34
sOwq, sOgu, sOxn, sOk, sOv = 35, 36, 37, 38, 39
sMq, sMg = 40, 41
sCnt = 42
sHt = 43
sOo = 46
sT = 48
vQ = 0; vQ1 = 96; vS = 96; vP = [128, 144]; vT = 160
vAE, vAO, vAG = 192, 193, 194
vDq = 195
vDg = 198
vL16 = 199
vKA = 200
vVA = 202
vDk = 206
vDv = 209
vHo = 212
vL = 216
vX = 224
aB = 0; aA = 64; aG = 96
aO = 0; aK = 192; aV = 240
L_WQ = 0; L_GU = 49152; L_K = 81920; L_V = 0

WS_ST = 0x8000000
class Stamps:
    def __init__(self, on, base=64): self.on = on; self.n = 0; self.base = base; self.names = []
    def __call__(self, st, name):
        if not self.on: return
        b = self.base + 2 * self.n; self.n += 1; self.names.append(name)
        assert b + 1 < 100
        st.plain(f's_memtime s[100:101]\ns_waitcnt lgkmcnt(0)\ns_mov_b32 s{b}, s100\ns_memrealtime s[100:101]\ns_waitcnt lgkmcnt(0)\ns_mov_b32 s{b+1}, s100')
    def dump(self, srdws, sw, kidx):
        if not self.on: return []
        P = [f's_lshl_b32 s100, s2, 2\ns_add_u32 s100, s100, s{sw}\ns_lshl_b32 s100, s100, 8\ns_add_u32 s100, s100, {WS_ST + kidx * 0x100000}', 'v_mov_b32 v1, 0']
        for i in range(2 * self.n):
            P.append(f'v_mov_b32 v0, s{self.base+i}\nbuffer_store_dword v0, v1, {sr(srdws)}, s100 offen{off(4*i)}')
        return P

def gen_k1(name='attn_kernel', stamps=False):
    st = Stream(); st.mark('pro')
    T = Stamps(stamps); T(st, 'start')
    S = []; A = S.append
    A('s_cmp_ge_u32 s2, 256\ns_cbranch_scc1 L_k1_end')
    A('s_load_dwordx4 s[52:55], s[0:1], 8\ns_load_dwordx2 s[56:57], s[0:1], 24')
    A('s_load_dwordx4 s[60:63], s[0:1], 48\ns_load_dwordx2 s[58:59], s[0:1], 88')
    A(f'v_lshrrev_b32 v{vX}, 6, v0\nv_and_b32 v{vX+1}, 63, v0')
    A(f'v_readfirstlane_b32 s{sW}, v{vX}')
    l = vX + 1; g = vX + 2; r = vX + 3; c = vX + 4; rho = vX + 5; t0 = vX + 6; t1 = vX + 7; t2 = vX + 8; p = vX + 9; r8 = vX + 10; pos = vX + 11
    A(f's_and_b32 s{sT}, s2, 7\ns_lshl_b32 s{sT}, s{sT}, 2\ns_bfe_u32 s{sH}, s2, 0x20003\ns_add_u32 s{sH}, s{sH}, s{sT}')
    A(f's_lshr_b32 s{sQG}, s2, 5\ns_lshl_b32 s{sQG}, s{sQG}, 2\ns_add_u32 s{sQG}, s{sQG}, s{sW}')
    A(f'v_lshlrev_b32 v{vL16}, 4, v{l}')
    A(f's_and_b32 s{sT}, s{sW}, 1\ns_lshl_b32 s{sT}, s{sT}, 4\ns_lshr_b32 s{sT+1}, s{sW}, 1\ns_lshl_b32 s{sT+1}, s{sT+1}, 2\ns_add_u32 s{sT}, s{sT}, s{sT+1}')
    A(f's_mul_i32 s{sOwq}, s{sT}, 12288\ns_mul_i32 s{sT+1}, s{sH}, 384\ns_add_u32 s{sOwq}, s{sOwq}, s{sT+1}')
    A(f's_mul_i32 s{sOgu}, s{sT}, 3072\ns_mul_i32 s{sT+1}, s{sH}, 96\ns_add_u32 s{sOgu}, s{sOgu}, s{sT+1}')
    A(f's_mul_i32 s{sOxn}, s{sQG}, 81920')
    if WS_XN: A(f's_add_u32 s{sOxn}, s{sOxn}, {WS_XN}')
    A(f's_mul_i32 s{sMq}, s{sW}, 3072\ns_lshl_b32 s{sMg}, s{sW}, 10')
    A(f's_lshl_b32 s{sT+2}, s{sW}, 2')
    for i in range(3):
        A(f'v_add_u32 v{p}, {64*i}, v{l}')
        A(f'v_mul_u32_u24 v{r8}, 2731, v{p}\nv_lshrrev_b32 v{r8}, 16, v{r8}')
        A(f'v_mul_u32_u24 v{t0}, 24, v{r8}\nv_sub_u32 v{pos}, v{p}, v{t0}')
        A(f'v_bfe_u32 v{t0}, v{r8}, 1, 1\nv_lshlrev_b32 v{t0}, 2, v{t0}\nv_xor_b32 v{t0}, v{t0}, v{pos}')
        A(f'v_lshrrev_b32 v{t1}, 2, v{r8}\nv_and_b32 v{t2}, 3, v{r8}\nv_lshl_add_u32 v{t1}, v{t1}, 3, v{t2}')
        A(f'v_mul_u32_u24 v{t1}, 12288, v{t1}\nv_lshl_add_u32 v{vDq+i}, v{t0}, 4, v{t1}')
        A(f'v_mul_u32_u24 v{t1}, 384, v{r8}\nv_lshrrev_b32 v{t2}, 1, v{r8}')
        A(f'v_add_u32 v{t0}, s{sT+2}, v{t2}\nv_and_b32 v{t0}, 7, v{t0}\nv_xor_b32 v{t0}, v{t0}, v{pos}\nv_lshl_add_u32 v{vDk+i}, v{t0}, 4, v{t1}')
        A(f'v_lshlrev_b32 v{t0}, 1, v{t2}\nv_xor_b32 v{t0}, v{t0}, v{pos}\nv_lshl_add_u32 v{vDv+i}, v{t0}, 4, v{t1}')
        if i:
            for b in (vDq, vDk, vDv): A(f'v_subrev_u32 v{b+i}, {1024*i}, v{b+i}')
    A(f'v_mul_u32_u24 v{r8}, 10923, v{l}\nv_lshrrev_b32 v{r8}, 16, v{r8}')
    A(f'v_mul_u32_u24 v{t0}, 6, v{r8}\nv_sub_u32 v{pos}, v{l}, v{t0}')
    A(f'v_lshrrev_b32 v{t1}, 2, v{r8}\nv_and_b32 v{t2}, 3, v{r8}\nv_lshl_add_u32 v{t1}, v{t1}, 3, v{t2}')
    A(f'v_mul_u32_u24 v{t1}, 3072, v{t1}\nv_lshl_add_u32 v{t1}, v{pos}, 4, v{t1}')
    A(f'v_mov_b32 v{t0}, {OOB}\nv_cmp_gt_u32 vcc, 48, v{l}\nv_cndmask_b32 v{vDg}, v{t0}, v{t1}, vcc')
    srd(S, sWQ, 56, 640 * 12288); srd(S, sWG, 60, 640 * 3072); srd(S, sWU, 62, 640 * 3072); srd(S, sWS, 58, WS_SIZE)
    st.plain(*S); S.clear()

    def mk(m0, text, first, **kw):
        return (m0 if first else None, Ins(text, m0=m0, **kw))
    def dma_wq(s, i):
        return mk(f's_add_u32 m0, s{sMq}, {L_WQ + (s % 4) * 12288}',
                  f'buffer_load_dwordx4 v{vDq+i}, {sr(sWQ)}, s{sOwq} offen{off(i*1024)} lds', i == 0, ldsw=(('wq', s % 4), ('w', s), True), tag=('w', s))
    def dma_gu(s, i):
        return mk(f's_add_u32 m0, s{sMg}, {L_GU + (s % 4) * 8192 + i * 4096}',
                  f'buffer_load_dwordx4 v{vDg}, {sr(sWU if i else sWG)}, s{sOgu} offen lds', True, ldsw=(('gu', s % 4), ('w', s), True), tag=('w', s))
    def ld_b(s, j):
        return Ins(f'buffer_load_dwordx4 {ar(aB + (s % 4) * 16 + j * 4)}, v{vL16}, {sr(sWS)}, s{sOxn} offen{off(j*1024)}')
    def dma_k(t, i):
        return mk(f's_add_u32 m0, s{sMq}, {L_K + (t % 4) * 12288}',
                  f'buffer_load_dwordx4 v{vDk+i}, {sr(sK)}, s{sOk} offen{off(i*1024)} lds', i == 0, ldsw=(('k', t % 4), ('k', t), True), tag=('k', t))
    def dma_v(t, i):
        return mk(f's_add_u32 m0, s{sMq}, {L_V + (t % 4) * 12288}',
                  f'buffer_load_dwordx4 v{vDv+i}, {sr(sV)}, s{sOv} offen{off(i*1024)} lds', i == 0, ldsw=(('wq', t % 4), ('v', t), True), tag=('v', t))
    bump_wq = f's_add_u32 s{sOwq}, s{sOwq}, 393216'
    bump_gu = f's_add_u32 s{sOgu}, s{sOgu}, 98304'
    bump_xn = f's_add_u32 s{sOxn}, s{sOxn}, 4096'
    bump_k = f's_add_u32 s{sOk}, s{sOk}, 12288'
    bump_v = f's_add_u32 s{sOv}, s{sOv}, 12288'

    P = []
    for s in range(3):
        for j in range(4): P.append(ld_b(s, j))
        P.append(bump_xn)
        for i in range(3): P += [x for x in dma_wq(s, i) if x]
        P.append(bump_wq)
        if s < 2:
            for i in range(2): P += dma_gu(s, i)
            P.append(bump_gu)
    pslot = st.plain(*P)
    A(f's_mul_i32 s{sT}, s{sH}, 786432\ns_add_u32 s{sT}, s{sT}, 589824')
    A(f's_add_u32 s52, s52, s{sT}\ns_addc_u32 s53, s53, 0\ns_add_u32 s54, s54, s{sT}\ns_addc_u32 s55, s55, 0')
    srd(S, sK, 52, 196608); srd(S, sV, 54, 196608)
    A(f's_mov_b32 s{sOk}, s{sMq}\ns_mov_b32 s{sOv}, s{sMq}')
    A(f'v_lshrrev_b32 v{g}, 4, v{l}\nv_bfe_u32 v{r}, v{l}, 2, 2\nv_and_b32 v{c}, 3, v{l}\nv_lshrrev_b32 v{rho}, 2, v{l}')
    A(f'v_mul_u32_u24 v{t0}, 384, v{rho}\nv_lshl_add_u32 v{t1}, v{c}, 4, v{t0}\nv_bfe_u32 v{t2}, v{rho}, 1, 1\nv_lshlrev_b32 v{t2}, 6, v{t2}')
    A(f'v_add_u32 v{vAE}, v{t1}, v{t2}\nv_sub_u32 v{vAO}, v{t1}, v{t2}')
    A(f'v_lshl_add_u32 v{t1}, v{c}, 3, v{t0}\nv_bfe_u32 v{t2}, v{rho}, 1, 2')
    for b in range(4):
        A(f'v_xor_b32 v{p}, {b}, v{t2}\nv_lshl_add_u32 v{vVA+b}, v{p}, 5, v{t1}')
    A(f'v_and_b32 v{t0}, 7, v{rho}\nv_mul_u32_u24 v{t0}, 96, v{t0}\nv_lshrrev_b32 v{t1}, 5, v{l}\nv_lshl_add_u32 v{t0}, v{t1}, 10, v{t0}')
    A(f'v_lshl_add_u32 v{t0}, v{c}, 3, v{t0}\nv_add_u32 v{vAG}, {L_GU}, v{t0}')
    A(f'v_and_b32 v{t0}, 15, v{l}\nv_lshrrev_b32 v{t1}, 1, v{t0}\nv_xor_b32 v{t1}, v{t1}, v{g}\nv_lshlrev_b32 v{t1}, 4, v{t1}')
    A(f'v_mul_u32_u24 v{t2}, 384, v{t0}\nv_add_u32 v{t2}, {L_K}, v{t2}')
    A(f'v_add_u32 v{vKA}, v{t2}, v{t1}\nv_xor_b32 v{t1}, 64, v{t1}\nv_add_u32 v{vKA+1}, v{t2}, v{t1}')
    A(f'v_lshrrev_b32 v{t1}, 5, v{l}\nv_lshlrev_b32 v{t1}, 8, v{t1}\nv_lshl_add_u32 v{t1}, v{t0}, 4, v{t1}\nv_and_b32 v{t2}, 1, v{g}\nv_lshl_add_u32 v{vHo}, v{t2}, 3, v{t1}')
    for t in range(3):
        A(f's_mul_i32 s{sT}, s{sH}, 3\ns_add_u32 s{sT}, s{sT}, {t}\ns_and_b32 s{sT+1}, s{sT}, 1\ns_lshr_b32 s{sT}, s{sT}, 1')
        A(f's_lshl_b32 s{sT}, s{sT}, 12\ns_lshl_b32 s{sT+1}, s{sT+1}, 9\ns_add_u32 s{sT}, s{sT}, s{sT+1}')
        A(f's_mul_i32 s{sT+1}, s{sQG}, {48*4096}\ns_add_u32 s{sT}, s{sT}, s{sT+1}\ns_add_u32 s{sHt+t}, s{sT}, {WS_H}')
    A(f's_mul_i32 s{sT}, s{sQG}, {192*4096}\ns_mul_i32 s{sT+1}, s{sH}, {6*4096}\ns_add_u32 s{sT}, s{sT}, s{sT+1}\ns_add_u32 s{sOo}, s{sT}, {WS_O}')
    for i in range(192): A(f'v_mov_b32 v{i}, 0')
    for i in range(96): A(f'v_accvgpr_write_b32 a{aG+i}, 0')
    for i in range(4): A(f'v_mov_b32 v{vL+i}, 0')
    A(f's_mov_b32 s{sCnt}, 4')
    st.plain(*S); S.clear()

    def a_tile(t):
        if t < 12:
            ds, e = t >> 1, t & 1
            return (lambda qt: vr((vQ1 if e else vQ) + (ds * 4 + qt) * 4), vAO if ds & 1 else vAE, ds * 64 + e * 8, 6144, 12288, 'wq')
        u, tt = divmod(t - 12, 3)
        return (lambda qt: ar(aG + u * 48 + (tt * 4 + qt) * 4), vAG, u * 4096 + tt * 32, 2048, 8192, 'gu')
    def a_reads(s, t):
        n = s * 18 + t
        acc, va, off, d2, ss, reg = a_tile(t)
        b = aA + (n % 4) * 4
        return [Ins(f'ds_read_b64_tr_b16 {ar(b + 2*h, 2)}, v{va} offset:{off + (s % 4) * ss + h * d2}', ldsr=((reg, s % 4), ('w', s), True)) for h in range(2)]
    P = [Ins('', need=[('w', 0)]), 's_barrier']
    for t in range(3): P += a_reads(0, t)
    T(st, 'setup')
    st.plain(*P)
    T(st, 'firstdata')
    g0 = {}
    for s in range(20):
        if s % 4 == 0:
            if s < 16:
                st.mark('loopA', s // 4, True); st.plain('L_loopA:')
            else: st.mark('tailA'); T(st, 'loopA')
        for t in range(18):
            acc = a_tile(t)[0]; n = s * 18 + t
            for qt in range(4):
                i = st.mfma(f'{MF} {acc(qt)}, {ar(aA + (n % 4) * 4)}, {ar(aB + (s % 4) * 16 + qt * 4)}, {acc(qt)}')
                if t == 0 and qt == 0: g0[s] = i
    def put_dma(g, d):
        if d[0]: st.puts(g - 1, d[0])
        st.put(g, d[1])
    for s in range(20):
        G = lambda per, k: g0[s] + per * 4 + k
        for t in range(18):
            s2, t2_ = (s, t + 3) if t + 3 < 18 else (s + 1, t + 3 - 18)
            if s2 < 20:
                rr = a_reads(s2, t2_); st.put(G(t, 0), rr[0]); st.put(G(t, 1), rr[1])
        if s + 2 < 20:
            for i in range(2): put_dma(G(i, 2), dma_gu(s + 2, i))
            st.puts(G(2, 0), bump_gu)
        if s + 3 < 20:
            for j in range(4): st.put(G(2 + j, 2), ld_b(s + 3, j))
            st.puts(G(6, 0), bump_xn)
            for i in range(3): put_dma(G(15 + i, 2), dma_wq(s + 3, i))
        if s > 0 and s + 2 < 20: st.puts(G(0, 0), bump_wq)
        if s == 0: st.puts(G(0, 0), bump_wq)
        need = [('w', s + 1)]
        if s == 19: need = [('k', 0), ('k', 1)]
        pb = 14 if s < 19 else 11
        st.puts(G(pb, 3), Ins('', need=need)); st.put(G(pb, 3), 's_barrier')
        if s >= 17:
            for i in range(3): put_dma(G(15 + i, 2), dma_v(s - 17, i))
        if s > 17: st.puts(G(0, 0), bump_v)
        if s in (16, 17):
            for kk in range(2):
                for i in range(3): put_dma(G(7 + kk * 3 + i, 2), dma_k((s - 16) * 2 + kk, i))
                st.puts(G(10 + kk * 3, 0), bump_k)
        if s < 16 and s % 4 == 3:
            st.puts(G(8, 0), f's_sub_u32 s{sCnt}, s{sCnt}, 1')
            st.puts(G(17, 2), f's_cmp_lg_u32 s{sCnt}, 0')
            st.puts(G(17, 3), Ins(ar(aA + ((s * 18 + 18) % 4) * 4), need=[]))
            st.pute(G(17, 3), 's_cbranch_scc1 L_loopA')
    st.slots[pslot]['fl'].append(Ins(f's_sub_u32 s{sOwq}, s{sOwq}, 393216'))

    def k_read(t, f, base):
        kt, ds = divmod(f, 6)
        return Ins(f'ds_read_b128 {ar(base + f * 4)}, v{vKA + (ds & 1)} offset:{(t % 4) * 12288 + kt * 6144 + (ds >> 1) * 128}', ldsr=(('k', t % 4), ('k', t), True))
    def v_reads(t, dt):
        b = aV + (dt % 4) * 4
        return [Ins(f'ds_read_b64_tr_b16 {ar(b + 2*h, 2)}, v{vVA + (dt & 3)} offset:{L_V + (t % 4) * 12288 + (dt >> 2) * 128 + h * 6144}', ldsr=(('wq', t % 4), ('v', t), True)) for h in range(2)]
    for f in range(12):
        per, k = 12 + f // 2, 3 if f % 2 else (2 if f < 6 else 0)
        st.put(g0[19] + per * 4 + k, k_read(0, f, aK))

    st.mark('trans'); T(st, 'tailA')
    P = [bump_v]
    for ds in range(6):
        for qt in range(4):
            a = vQ + (ds * 4 + qt) * 4; b = vQ1 + (ds * 4 + qt) * 4
            P += [f'v_cvt_pk_bf16_f32 v{a}, v{a}, v{a+1}', f'v_cvt_pk_bf16_f32 v{a+1}, v{a+2}, v{a+3}',
                  f'v_cvt_pk_bf16_f32 v{a+2}, v{b}, v{b+1}', f'v_cvt_pk_bf16_f32 v{a+3}, v{b+2}, v{b+3}']
    P.append(f's_mov_b32 s{sT}, {fbits(CQ*CQ)}')
    st.plain(*P)
    def qk_mfmas(kb):
        first = None
        for ch in range(8):
            qt, kt = ch >> 1, ch & 1
            for ds in range(6):
                d = vr(vS + ch * 4)
                i = st.mfma(f'{MF} {d}, {ar(kb + (kt * 6 + ds) * 4)}, {vr(vQ + (ds * 4 + qt) * 4)}, {d if ds else 0}')
                if first is None: first = i
        return first
    def sm_ops(ch, pb):
        qt, kt = ch >> 1, ch & 1; s0 = vS + ch * 4
        e = [f'v_exp_f32 v{s0+j}, v{s0+j}' for j in range(4)]
        a = [f'v_add_f32 v{vL+qt}, v{vL+qt}, v{s0+j}' for j in range(4)]
        cv = [f'v_cvt_pk_bf16_f32 v{vP[pb] + qt*4 + kt*2 + j}, v{s0+2*j}, v{s0+2*j+1}' for j in range(2)]
        return e, a, cv
    q0 = qk_mfmas(aK)
    H = []
    for t in range(3):
        for qt in range(4):
            x = vX + ((t * 4 + qt) & 1) * 16
            ga = aG + (t * 4 + qt) * 4; ua = ga + 48
            H += [f'v_accvgpr_read_b32 v{x+j}, a{ga+j}' for j in range(4)]
            H += [f'v_mul_f32 v{x+8+j}, {fbits(-math.log2(math.e)/CQ)}, v{x+j}' for j in range(4)]
            H += [f'v_accvgpr_read_b32 v{x+4+j}, a{ua+j}' for j in range(4)]
            H += [f'v_exp_f32 v{x+8+j}, v{x+8+j}' for j in range(4)]
            H += [f'v_mul_f32 v{x+j}, v{x+j}, v{x+4+j}' for j in range(4)]
            H += [f'v_fma_f32 v{x+8+j}, v{x+8+j}, s{sT}, s{sT}' for j in range(4)]
            H += [f'v_rcp_f32 v{x+8+j}, v{x+8+j}' for j in range(4)]
            H += [f'v_mul_f32 v{x+j}, v{x+j}, v{x+8+j}' for j in range(4)]
            H += [f'v_cvt_pk_bf16_f32 v{x+12}, v{x}, v{x+1}', f'v_cvt_pk_bf16_f32 v{x+13}, v{x+2}, v{x+3}']
            H += [f'buffer_store_dwordx2 v[{x+12}:{x+13}], v{vHo}, {sr(sWS)}, s{sHt+t} offen' + (f' offset:{qt*1024}' if qt else '')]
    for f in range(12): st.put(q0 + 2 + f * 3, k_read(1, f, 0))
    per = len(H) / 48.0
    for i, x in enumerate(H): st.put(q0 + int(i / per), x)
    P = []
    for ch in range(8):
        e, a, cv = sm_ops(ch, 0); P += e + a + cv
    P.append(f's_mov_b32 s{sCnt}, 3')
    P.append(Ins(ar(0, 48), need=[]))
    st.plain(*P)

    b0 = {}
    for it in range(16):
        if it == 0: st.mark('it0'); T(st, 'trans')
        elif it <= 12 and it % 4 == 1:
            st.mark('loopB', it // 4, True); st.plain('L_loopB:')
        elif it == 13: st.mark('tailB'); T(st, 'loopB')
        if it < 15: b0[it] = qk_mfmas(0 if it == 0 else aK)
        else: b0[it] = st.n() - 48
        for dt in range(12):
            for qt in range(4):
                d = ar(aO + (dt * 4 + qt) * 4)
                st.mfma(f'{MF} {d}, {ar(aV + (dt % 4) * 4)}, {vr(vP[it & 1] + qt * 4)}, {d if it else 0}')
    for it in range(16):
        G = lambda k: b0[it] + k
        last = it == 15
        bg = 0 if not last else 35
        need = [('v', it), ('k', it + 2)]
        st.puts(G(bg), Ins('', need=need)); st.put(G(bg), 's_barrier')
        gg = 2
        if it == 0:
            for i in range(3): put_dma(G(gg), dma_k(4, i)); gg += 1
            gg += 1
            st.puts(G(gg), bump_k)
        if it <= 12:
            for i in range(3): put_dma(G(gg), dma_v(it + 3, i)); gg += 1
            gg += 1
            for i in range(3): put_dma(G(gg), dma_k(it + 5, i)); gg += 1
            st.puts(G(gg), bump_k); st.puts(G(gg + 1), bump_v)
        dma_end = gg
        for dt in range(12):
            rr = v_reads(it, dt); gp = 36 + dt * 4
            st.put(G(gp), rr[0]); st.put(G(gp + 1), rr[1])
        if it + 2 < 16:
            kg = [50 + 4 * i for i in range(9)] + [84, 85, 86]
            for f in range(12): st.put(G(kg[f]), k_read(it + 2, f, aK))
        if not last:
            gcur = max(10, dma_end); egap = {}
            for ch in range(8):
                e, a, cv = sm_ops(ch, (it + 1) & 1)
                gcur = max(gcur, 6 * ch + 10)
                for j in range(4):
                    while st.cost(G(gcur)) > 0: gcur += 1
                    st.put(G(gcur), e[j]); egap[ch, j] = gcur; gcur += 1
                if gcur < 36: gcur += 2
            gv = 0
            for ch in range(8):
                e, a, cv = sm_ops(ch, (it + 1) & 1)
                ops = [(a[0], 0), (a[1], 1), (cv[0], 1), (a[2], 2), (a[3], 3), (cv[1], 3)]
                for o, j in ops:
                    gv = max(gv, egap[ch, j] + 1)
                    while st.free(G(gv)) < 1: gv += 1
                    assert gv < 96, (it, ch)
                    st.put(G(gv), o)
        if 1 <= it <= 12 and it % 4 == 0:
            st.puts(G(20), f's_sub_u32 s{sCnt}, s{sCnt}, 1')
            st.puts(G(94), f's_cmp_lg_u32 s{sCnt}, 0')
            st.pute(G(95), 's_cbranch_scc1 L_loopB')
        if it < 14: st.puts(G(95), Ins(ar(aK, 48), need=[]))

    st.mark('epi'); T(st, 'tailB')
    P = []
    for qt in range(4): P += xlane_sum(vL + qt, vX + qt)
    P.append(f's_mov_b32 s{sT}, {fbits(2.0**-24)}\ns_mov_b32 s{sT+1}, {fbits(2.0**24)}')
    P.append(f'v_min3_f32 v{vX}, v{vL}, v{vL+1}, v{vL+2}\nv_min_f32 v{vX}, v{vX}, v{vL+3}')
    P.append(f'v_add_f32 v{vX+1}, v{vL}, v{vL+1}\nv_add_f32 v{vX+2}, v{vL+2}, v{vL+3}\nv_add_f32 v{vX+1}, v{vX+1}, v{vX+2}')
    P.append(f'v_cmp_nle_f32 s[{sT+2}:{sT+3}], s{sT}, v{vX}\nv_cmp_nge_f32 vcc, s{sT+1}, v{vX+1}')
    P.append(f's_nop 1\ns_or_b64 vcc, vcc, s[{sT+2}:{sT+3}]\ns_cbranch_scc1 L_fallback\nL_join:')
    for qt in range(4): P.append(f'v_rcp_f32 v{vX+2*qt}, v{vL+qt}')
    for qt in range(4): P.append(f'v_mov_b32 v{vX+2*qt+1}, v{vX+2*qt}')
    n = 0
    for ds in range(6):
        for qt in range(4):
            x = 96 + (n % 4) * 16; n += 1
            for e in range(2):
                a = aO + ((2 * ds + e) * 4 + qt) * 4
                P += [f'v_accvgpr_read_b32 v{x+e*4+j}, a{a+j}' for j in range(4)]
            P += [f'v_pk_mul_f32 v[{x+2*j}:{x+2*j+1}], v[{x+2*j}:{x+2*j+1}], v[{vX+2*qt}:{vX+2*qt+1}]' for j in range(4)]
            P += [f'v_cvt_pk_bf16_f32 v{x+8+j}, v{x+2*j}, v{x+2*j+1}' for j in range(4)]
            P.append(f'buffer_store_dwordx4 {vr(x+8)}, v{vL16}, {sr(sWS)}, s{sOo} offen' + (f' offset:{qt*1024}' if qt else ''))
        P.append(f's_add_u32 s{sOo}, s{sOo}, 4096')
    st.plain(*P)
    T(st, 'epi')
    if stamps: st.plain('s_waitcnt vmcnt(0)')
    T(st, 'drain')
    st.plain(*T.dump(sWS, sW, 1), 'L_k1_end:\ns_endpgm')
    if stamps: print('STAMPS', T.names)
    k = Kernel(name, st.segments())
    lines = k.finalize(); k.gap_report()
    lines += gen_fallback().finalize()
    return kernel_text(name, lines), kernel_desc(name), f'; @launch kernel={name} grid=(256,1,1) block=(256,1,1) lds=163840'

def gen_fallback():
    st = Stream(); st.mark('fb0')
    vM = 160; vN = 164; vKo = 180; vVr = 181; t0 = 182; t1 = 183
    sO2 = sT; sO3 = sT + 1; sM = sT + 2; sC = sT + 3
    P = ['L_fallback:', 's_waitcnt vmcnt(0) lgkmcnt(0)', 's_nop 15']
    P.append(f'v_lshrrev_b32 v{t0}, 4, v{vL16}\nv_and_b32 v{t1}, 15, v{t0}\nv_mul_u32_u24 v{t1}, 384, v{t1}\nv_lshrrev_b32 v{vKo}, 4, v{t0}\nv_lshl_add_u32 v{vKo}, v{vKo}, 4, v{t1}')
    P.append(f's_lshl_b32 s{sM}, s{sW}, 14\ns_cmp_lt_u32 s{sW}, 2\ns_cselect_b32 s{sC}, 0, 49152\ns_add_u32 s{sM}, s{sM}, s{sC}\ns_add_u32 s{sM}, s{sM}, 49152')
    P.append(f'v_lshrrev_b32 v{t1}, 2, v{t0}\nv_mul_u32_u24 v{t1}, 384, v{t1}\nv_and_b32 v{t0}, 3, v{t0}\nv_lshl_add_u32 v{t1}, v{t0}, 3, v{t1}\nv_add_u32 v{vVr}, s{sM}, v{t1}')
    for qt in range(4): P.append(f'v_mov_b32 v{vM+qt}, 0xff800000')
    P.append(f's_mov_b32 s{sO2}, 0')
    st.plain(*P)
    def kloads():
        L = [f's_add_u32 s{sO3}, s{sO2}, 6144']
        for f in range(12):
            kt, ds = divmod(f, 6)
            L.append(f'buffer_load_dwordx4 {ar(aK + f*4)}, v{vKo}, {sr(sK)}, s{sO3 if kt else sO2} offen' + (f' offset:{ds*64}' if ds else ''))
        return L
    def qk(useM):
        L = []
        for ch in range(8):
            qt, kt = ch >> 1, ch & 1
            for ds in range(6):
                d = vr(vS + ch * 4)
                cc = d if ds else (vr(vN + qt * 4) if useM else 0)
                L.append(f'{MF} {d}, {ar(aK + (kt * 6 + ds) * 4)}, {vr(vQ + (ds * 4 + qt) * 4)}, {cc}')
        return L
    for it in range(2):
        st.mark('fb1', it, True)
        P = ['L_fb1:'] + kloads() + ['s_waitcnt vmcnt(0)'] + qk(False) + ['s_nop 15']
        for ch in range(8):
            s0 = vS + ch * 4; m = vM + (ch >> 1)
            P += [f'v_max3_f32 v{m}, v{m}, v{s0}, v{s0+1}', f'v_max3_f32 v{m}, v{m}, v{s0+2}, v{s0+3}']
        P.append(f's_add_u32 s{sO2}, s{sO2}, 12288\ns_cmp_lt_u32 s{sO2}, 196608\ns_cbranch_scc1 L_fb1')
        st.plain(*P)
    st.mark('fb2')
    P = []
    for qt in range(4):
        P += xlane_sum(vM + qt, t0, 'v_max_f32')
        P += [f'v_sub_f32 v{vN+qt*4+j}, 0, v{vM+qt}' for j in range(4)]
        P.append(f'v_mov_b32 v{vL+qt}, 0')
    P += [f'v_accvgpr_write_b32 a{aO+i}, 0' for i in range(192)]
    P.append(f's_mov_b32 s{sO2}, 0')
    st.plain(*P)
    for it in range(2):
        st.mark('fb3', it, True)
        P = ['L_fb3:'] + kloads()
        for i in range(12):
            P.append(f's_add_u32 m0, s{sM}, {i*1024}\ns_add_u32 s{sC}, s{sO2}, {i*1024}')
            P.append(f'buffer_load_dwordx4 v{vL16}, {sr(sV)}, s{sC} offen lds')
        P += ['s_waitcnt vmcnt(0)'] + qk(True) + ['s_nop 15']
        for ch in range(8):
            qt, kt = ch >> 1, ch & 1; s0 = vS + ch * 4
            P += [f'v_exp_f32 v{s0+j}, v{s0+j}' for j in range(4)]
            P += [f'v_add_f32 v{vL+qt}, v{vL+qt}, v{s0+j}' for j in range(4)]
            P += [f'v_cvt_pk_bf16_f32 v{vP[0] + qt*4 + kt*2 + j}, v{s0+2*j}, v{s0+2*j+1}' for j in range(2)]
        for dt in range(12):
            b = aV + (dt % 4) * 4
            P += [f'ds_read_b64_tr_b16 {ar(b + 2*h, 2)}, v{vVr} offset:{dt*32 + h*6144}' for h in range(2)]
            P.append('s_waitcnt lgkmcnt(0)')
            for qt in range(4):
                d = ar(aO + (dt * 4 + qt) * 4)
                P.append(f'{MF} {d}, {ar(b)}, {vr(vP[0] + qt * 4)}, {d}')
        P.append(f's_add_u32 s{sO2}, s{sO2}, 12288\ns_cmp_lt_u32 s{sO2}, 196608\ns_cbranch_scc1 L_fb3')
        st.plain(*P)
    st.mark('fb4')
    P = []
    for qt in range(4): P += xlane_sum(vL + qt, t0)
    P.append('s_nop 15\ns_branch L_join')
    st.plain(*P)
    return Kernel('fallback', st.segments())


def gen_k2(name='oproj_kernel', stamps=False):
    st = Stream(); st.mark('pro')
    T = Stamps(stamps); T(st, 'start')
    sWO = 8; sX = 33; sJ = 47; sOw = 35; sOb = 36; sM = 40; sSP = 43
    vA = 192; vD = 200; vL8 = 206
    aB = 0; aA = 96
    S = []; A = S.append
    A('s_cmp_ge_u32 s2, 256\ns_cbranch_scc1 L_k2_end')
    A('s_load_dwordx2 s[56:57], s[0:1], 32\ns_load_dwordx2 s[58:59], s[0:1], 88')
    A(f'v_lshrrev_b32 v{vX}, 6, v0\nv_and_b32 v{vX+1}, 63, v0')
    A(f'v_readfirstlane_b32 s{sW}, v{vX}')
    l = vX + 1; c = vX + 4; rho = vX + 5; t0 = vX + 6; t1 = vX + 7; t2 = vX + 8; p = vX + 9; r16 = vX + 10; pos = vX + 11
    A(f's_and_b32 s{sX}, s2, 7\ns_bfe_u32 s{sJ}, s2, 0x20003')
    A(f's_lshr_b32 s{sQG}, s2, 5\ns_lshl_b32 s{sQG}, s{sQG}, 2\ns_add_u32 s{sQG}, s{sQG}, s{sW}')
    A(f'v_lshlrev_b32 v{vL16}, 4, v{l}\nv_lshlrev_b32 v{vL8}, 3, v{l}')
    A(f's_mul_i32 s{sOw}, s{sX}, {768*1280}\ns_mul_i32 s{sT}, s{sW}, {16*1280}\ns_add_u32 s{sOw}, s{sOw}, s{sT}\ns_mul_i32 s{sT}, s{sJ}, 320\ns_add_u32 s{sOw}, s{sOw}, s{sT}')
    A(f's_mul_i32 s{sOb}, s{sQG}, {192*4096}\ns_mul_i32 s{sT}, s{sX}, {24*4096}\ns_add_u32 s{sOb}, s{sOb}, s{sT}\ns_add_u32 s{sOb}, s{sOb}, {WS_O}')
    A(f's_mul_i32 s{sM}, s{sW}, 5120')
    for i in range(5):
        A(f'v_add_u32 v{p}, {64*i}, v{l}')
        A(f'v_mul_u32_u24 v{r16}, 3277, v{p}\nv_lshrrev_b32 v{r16}, 16, v{r16}')
        A(f'v_mul_u32_u24 v{t0}, 20, v{r16}\nv_sub_u32 v{pos}, v{p}, v{t0}')
        A(f'v_bfe_u32 v{t0}, v{r16}, 2, 1\nv_lshlrev_b32 v{t0}, 1, v{t0}\nv_xor_b32 v{t0}, v{t0}, v{pos}')
        A(f'v_mul_u32_u24 v{t1}, 1280, v{r16}\nv_lshl_add_u32 v{vD+i}, v{t0}, 4, v{t1}')
        if 0 < i < 4: A(f'v_subrev_u32 v{vD+i}, {1024*i}, v{vD+i}')
    srd(S, sWO, 56, 6144 * 1280); srd(S, sWS, 58, WS_SIZE)
    st.plain(*S); S.clear()
    def dma(s, i):
        m0 = f's_add_u32 m0, s{sM}, {(s % 6) * 20480 + (4096 if i == 4 else 0)}'
        return (m0 if i in (0, 4) else None,
                Ins(f'buffer_load_dwordx4 v{vD+i}, {sr(sWO)}, s{sOw} offen{off((i % 4) * 1024)} lds', m0=m0, ldsw=(('wo', s % 6), ('w', s), True), tag=('w', s)))
    def ld_b(s, kk, j):
        return Ins(f'buffer_load_dwordx4 {ar(aB + (s % 3) * 32 + kk * 16 + j * 4)}, v{vL16}, {sr(sWS)}, s{sOb} offen{off(j*1024)}')
    bump_w = f's_add_u32 s{sOw}, s{sOw}, {64*1280}'
    bump_b = f's_add_u32 s{sOb}, s{sOb}, 4096'
    P = []
    for s in range(5):
        for i in range(5): P += [x for x in dma(s, i) if x]
        P.append(bump_w)
        if s < 2:
            for kk in range(2):
                for j in range(4): P.append(ld_b(s, kk, j))
                P.append(bump_b)
    st.plain(*P)
    A(f'v_and_b32 v{c}, 3, v{l}\nv_lshrrev_b32 v{rho}, 2, v{l}')
    A(f'v_mul_u32_u24 v{t0}, 320, v{rho}\nv_lshl_add_u32 v{t0}, v{c}, 3, v{t0}\nv_bfe_u32 v{t2}, v{rho}, 2, 1\nv_lshlrev_b32 v{t2}, 5, v{t2}')
    A(f'v_add_u32 v{vA}, v{t0}, v{t2}\nv_sub_u32 v{vA+1}, v{t0}, v{t2}')
    A(f'v_add_u32 v{vA+2}, 61440, v{vA}\nv_add_u32 v{vA+3}, 61440, v{vA+1}')
    A(f's_lshr_b32 s{sT}, s2, 5\ns_lshl_b32 s{sT}, s{sT}, 2\ns_add_u32 s{sT}, s{sT}, s{sJ}\ns_lshl_b32 s{sT}, s{sT}, 2\ns_add_u32 s{sT}, s{sT}, s{sW}')
    A(f's_lshl_b32 s{sT}, s{sT}, 6\ns_add_u32 s{sT}, s{sT}, s{sX}\ns_mul_i32 s{sT}, s{sT}, 2560\ns_add_u32 s{sSP}, s{sT}, {WS_SP}')
    st.plain(*S); S.clear()
    def a_reads(s, nt):
        n = s * 10 + nt
        b = aA + (n % 3) * 8
        va = vA + (nt & 1) + 2 * ((s % 6) // 3)
        return [Ins(f'ds_read_b64_tr_b16 {ar(b + 2*h, 2)}, v{va} offset:{(s % 3) * 20480 + h * 5120 + nt * 32}', ldsr=(('wo', s % 6), ('w', s), True)) for h in range(4)]
    T(st, 'setup')
    P = [Ins('', need=[('w', 0)]), 's_barrier']
    for nt in range(2): P += a_reads(0, nt)
    st.plain(*P)
    T(st, 'firstdata')
    st.mark('main')
    g0 = {}
    for s in range(12):
        for nt in range(10):
            n = s * 10 + nt
            for qt in range(4):
                for kk in range(2):
                    d = vr((nt * 4 + qt) * 4)
                    i = st.mfma(f'{MF} {d}, {ar(aA + (n % 3) * 8 + kk * 4)}, {ar(aB + (s % 3) * 32 + kk * 16 + qt * 4)}, {d if (s or kk) else 0}')
                    if nt == 0 and qt == 0 and kk == 0: g0[s] = i
    def put_dma(g, d):
        if d[0]: st.puts(g - 1, d[0])
        st.put(g, d[1])
    for s in range(12):
        G = lambda per, k: g0[s] + per * 8 + k
        for nt in range(10):
            s2, n2 = (s, nt + 2) if nt + 2 < 10 else (s + 1, nt + 2 - 10)
            if s2 < 12:
                rr = a_reads(s2, n2)
                for h, k in enumerate((0, 1, 4, 5)): st.put(G(nt, k), rr[h])
        if s + 2 < 12:
            for kk in range(2):
                for j in range(4): st.put(G(1 + kk * 2 + j // 2, 2 + 4 * (j & 1)), ld_b(s + 2, kk, j))
                st.puts(G(3 + kk * 2, 0), bump_b)
        if s < 11:
            st.puts(G(7, 7), Ins('', need=[('w', s + 1)])); st.put(G(7, 7), 's_barrier')
        if s + 5 < 12:
            for i in range(5): put_dma(G(8, 2 + 4 * i), dma(s + 5, i))
            st.puts(G(10, 4), bump_w)
    st.mark('epi'); T(st, 'main')
    P = []; n = 0
    for hf in range(2):
        for qt in range(4):
            x = 160 + (n % 2) * 12; n += 1
            for t in range(5):
                a = ((5 * hf + t) * 4 + qt) * 4
                P += [f'v_cvt_pk_bf16_f32 v{x+2*t}, v{a}, v{a+1}', f'v_cvt_pk_bf16_f32 v{x+2*t+1}, v{a+2}, v{a+3}']
            P.append(f'buffer_store_dwordx4 {vr(x)}, v{vL16}, {sr(sWS)}, s{sSP} offen')
            P.append(f'buffer_store_dwordx4 {vr(x+4)}, v{vL16}, {sr(sWS)}, s{sSP} offen offset:1024')
            P.append(f'buffer_store_dwordx2 {vr(x+8, 2)}, v{vL8}, {sr(sWS)}, s{sSP} offen offset:2048')
            P.append(f's_add_u32 s{sSP}, s{sSP}, 20480')
    st.plain(*P)
    T(st, 'epi')
    if stamps: st.plain('s_waitcnt vmcnt(0)')
    T(st, 'drain')
    st.plain(*T.dump(sWS, sW, 2), 'L_k2_end:\ns_endpgm')
    if stamps: print('STAMPS', T.names)
    k = Kernel(name, st.segments())
    lines = k.finalize(); k.gap_report()
    return kernel_text(name, lines), kernel_desc(name), f'; @launch kernel={name} grid=(256,1,1) block=(256,1,1) lds=163840'

def gen_k3(name='final_kernel', stamps=False):
    st = Stream(); st.mark('pro')
    T = Stamps(stamps); T(st, 'start')
    sWD = 8; sXI = 12; sOUT = 16; sX = 33; sJ = 47; sOw = 35; sOb = 36; sM = 40; sSP = 43; sN0 = 44; sOx = 45
    vA = 192; vD = 200; vL8 = 206; vXo = 207; vRw = 208; vRr = 212
    aB = 0; aA = 192
    S = []; A = S.append
    A('s_cmp_ge_u32 s2, 256\ns_cbranch_scc1 L_k3_end')
    A('s_load_dwordx4 s[52:55], s[0:1], 64\ns_load_dwordx2 s[56:57], s[0:1], 0\ns_load_dwordx2 s[58:59], s[0:1], 88')
    A(f'v_lshrrev_b32 v{vX}, 6, v0\nv_and_b32 v{vX+1}, 63, v0')
    A(f'v_readfirstlane_b32 s{sW}, v{vX}')
    l = vX + 1; c = vX + 4; rho = vX + 5; t0 = vX + 6; t1 = vX + 7; t2 = vX + 8; p = vX + 9; pos = vX + 11
    A(f's_and_b32 s{sX}, s2, 7\ns_bfe_u32 s{sJ}, s2, 0x20003')
    A(f's_lshr_b32 s{sQG}, s2, 5\ns_lshl_b32 s{sQG}, s{sQG}, 2\ns_lshr_b32 s{sT}, s{sX}, 1\ns_add_u32 s{sQG}, s{sQG}, s{sT}')
    A(f's_mul_i32 s{sN0}, s{sJ}, 320\ns_and_b32 s{sT}, s{sX}, 1\ns_mul_i32 s{sT}, s{sT}, 160\ns_add_u32 s{sN0}, s{sN0}, s{sT}')
    A(f'v_lshlrev_b32 v{vL16}, 4, v{l}\nv_lshlrev_b32 v{vL8}, 3, v{l}')
    A(f's_mul_i32 s{sOw}, s{sW}, {384*1280}\ns_add_u32 s{sOw}, s{sOw}, s{sN0}')
    A(f's_mul_i32 s{sT}, s{sQG}, {48*4096}\ns_mul_i32 s{sT+1}, s{sW}, {12*4096}\ns_add_u32 s{sT}, s{sT}, s{sT+1}\ns_add_u32 s{sT}, s{sT}, {WS_H}')
    for j in range(4):
        A(f's_add_u32 s{sT+1}, s{sW}, {j+1}\ns_and_b32 s{sT+1}, s{sT+1}, 3\ns_lshl_b32 s{sT+1}, s{sT+1}, 10\ns_add_u32 s{sOb+j}, s{sT}, s{sT+1}')
    A(f's_mul_i32 s{sM}, s{sW}, 40960')
    for i in range(5):
        A(f'v_add_u32 v{p}, {64*i}, v{l}')
        A(f'v_mul_u32_u24 v{rho}, 6554, v{p}\nv_lshrrev_b32 v{rho}, 16, v{rho}')
        A(f'v_mul_u32_u24 v{t0}, 10, v{rho}\nv_sub_u32 v{pos}, v{p}, v{t0}')
        A(f'v_bfe_u32 v{t0}, v{rho}, 2, 2\nv_lshrrev_b32 v{t1}, 4, v{rho}\nv_lshl_add_u32 v{t0}, v{t0}, 1, v{t1}\nv_and_b32 v{t1}, 3, v{rho}\nv_lshl_add_u32 v{t0}, v{t0}, 2, v{t1}')
        A(f'v_mul_u32_u24 v{t0}, 1280, v{t0}\nv_lshl_add_u32 v{vD+i}, v{pos}, 4, v{t0}')
        if 0 < i < 4: A(f'v_subrev_u32 v{vD+i}, {1024*i}, v{vD+i}')
    srd(S, sWD, 52, 1536 * 1280); srd(S, sWS, 58, WS_SIZE); srd(S, sXI, 56, 2048 * 1280); srd(S, sOUT, 54, 2048 * 1280)
    st.plain(*S); S.clear()
    def dma(s, i):
        m0 = f's_add_u32 m0, s{sM}, {(s % 8) * 5120 + (4096 if i == 4 else 0)}'
        return (m0 if i in (0, 4) else None,
                Ins(f'buffer_load_dwordx4 v{vD+i}, {sr(sWD)}, s{sOw} offen{off((i % 4) * 1024)} lds', m0=m0, ldsw=(('wd', s % 8), ('w', s), False), tag=('w', s)))
    vBo = 214
    def ld_b(s, j):
        return Ins(f'buffer_load_dwordx4 {ar(aB + s * 16 + j * 4)}, v{vBo}, {sr(sWS)}, s{sOb+j} offen')
    bump_w = f's_add_u32 s{sOw}, s{sOw}, {32*1280}'
    bump_b = f'v_add_u32 v{vBo}, 4096, v{vBo}'
    P = [f'v_mov_b32 v{vBo}, v{vL16}']
    NPRE = 6
    for s in range(NPRE):
        for i in range(5): P += [x for x in dma(s, i) if x]
        P.append(bump_w)
        for j in range(4): P.append(ld_b(s, j))
        P.append(bump_b)
    st.plain(*P)
    A(f'v_and_b32 v{c}, 3, v{l}\nv_lshrrev_b32 v{rho}, 2, v{l}')
    A(f'v_mul_u32_u24 v{t0}, 160, v{rho}\nv_lshl_add_u32 v{t0}, v{c}, 3, v{t0}\nv_add_u32 v{vA}, s{sM}, v{t0}')
    A(f'v_and_b32 v{t0}, 15, v{l}\nv_mul_u32_u24 v{t0}, 1280, v{t0}\nv_lshrrev_b32 v{t1}, 4, v{l}\nv_lshl_add_u32 v{vXo}, v{t1}, 3, v{t0}')
    A(f's_lshl_b32 s{sT}, s{sQG}, 2\ns_add_u32 s{sT}, s{sT}, s{sW}\ns_mul_i32 s{sT}, s{sT}, {16*1280}\ns_add_u32 s{sOx}, s{sT}, s{sN0}')
    A(f's_lshr_b32 s{sT}, s2, 5\ns_lshl_b32 s{sT}, s{sT}, 2\ns_add_u32 s{sT}, s{sT}, s{sJ}\ns_lshl_b32 s{sT}, s{sT}, 3\ns_add_u32 s{sT}, s{sT}, s{sX}')
    A(f's_lshl_b32 s{sT}, s{sT}, 2\ns_add_u32 s{sT}, s{sT}, s{sW}\ns_mul_i32 s{sT}, s{sT}, 20480\ns_add_u32 s{sSP}, s{sT}, {WS_SP}')
    for j in range(3):
        A(f's_add_u32 s{sT}, s{sW}, {j+1}\ns_and_b32 s{sT}, s{sT}, 3\ns_mul_i32 s{sT}, s{sT}, 15360\ns_add_u32 s{sT}, s{sT}, {j*5120}\nv_add_u32 v{vRw+j}, s{sT}, v{vL16}')
    A(f's_mul_i32 s{sT}, s{sW}, 15360\nv_add_u32 v{vRr}, s{sT}, v{vL16}')
    st.plain(*S); S.clear()
    def a_reads(s, nt):
        n = s * 5 + nt
        b = aA + (n % 4) * 4
        return [Ins(f'ds_read_b64_tr_b16 {ar(b + 2*h, 2)}, v{vA} offset:{(s % 8) * 5120 + h * 2560 + nt * 32}', ldsr=(('wd', s % 8), ('w', s), False)) for h in range(2)]
    T(st, 'setup')
    P = [Ins('', need=[('w', 0)])]
    for nt in range(3): P += a_reads(0, nt)
    st.plain(*P)
    T(st, 'firstdata')
    st.mark('main')
    g0 = {}
    for s in range(12):
        for nt in range(5):
            n = s * 5 + nt
            for qt in range(4):
                d = vr((nt * 4 + qt) * 4)
                i = st.mfma(f'{MF} {d}, {ar(aA + (n % 4) * 4)}, {ar(aB + s * 16 + qt * 4)}, {d if s else 0}')
                if nt == 0 and qt == 0: g0[s] = i
    def put_dma(g, d):
        if d[0]: st.puts(g - 1, d[0])
        st.put(g, d[1])
    vPt = 80
    for s in range(12):
        G = lambda per, k: g0[s] + per * 4 + k
        for nt in range(5):
            s2, n2 = (s, nt + 3) if nt + 3 < 5 else (s + 1, nt + 3 - 5)
            if s2 < 12:
                if n2 == 0: st.puts(G(nt, 0), Ins('', need=[('w', s2)]))
                rr = a_reads(s2, n2); st.put(G(nt, 0), rr[0]); st.put(G(nt, 1), rr[1])
        if s + NPRE < 12:
            for i in range(5): put_dma(G(i, 2), dma(s + NPRE, i))
            st.pute(G(4, 2), bump_w)
            for j in range(4): st.put(G(j, 3), ld_b(s + NPRE, j))
            st.put(G(4, 3), bump_b)
        else:
            L = []
            k0 = (s - (12 - NPRE)) * 2
            for x in (k0, k0 + 1):
                if x < 8:
                    b = vPt + x * 10
                    L += [f'buffer_load_dwordx4 {vr(b)}, v{vL16}, {sr(sWS)}, s{sSP} offen', f'buffer_load_dwordx4 {vr(b+4)}, v{vL16}, {sr(sWS)}, s{sSP} offen offset:1024',
                          f'buffer_load_dwordx2 {vr(b+8, 2)}, v{vL8}, {sr(sWS)}, s{sSP} offen offset:2048\ns_add_u32 s{sSP}, s{sSP}, 2560']
            if k0 == 8:
                L += [f'buffer_load_dwordx2 {vr(160+2*t, 2)}, v{vXo}, {sr(sXI)}, s{sOx} offen{off(32*t)}' for t in range(5)]
            for i, x in enumerate(L):
                for y in x.split('\n'): st.put(G(i // 2, 2 + i % 2), y)
    st.mark('epi'); T(st, 'main')
    P = ['s_barrier']
    regs = [('wd', i) for i in range(8)]
    for j in range(3):
        for t in range(5):
            P.append(Ins(f'ds_write_b128 v{vRw+j}, {vr((t*4+j)*4)} offset:{t*1024}', ldsw=(regs + ['red'], 'red', True), tag='red'))
    vSs = 172
    for x in range(8):
        b = vPt + x * 10
        for i in range(10):
            if x == 0:
                P += [f'v_lshlrev_b32 v{vSs+2*i}, 16, v{b+i}', f'v_and_b32 v{vSs+2*i+1}, 0xffff0000, v{b+i}']
            else:
                P += [f'v_lshlrev_b32 v{vX+2*(i%4)}, 16, v{b+i}', f'v_and_b32 v{vX+2*(i%4)+1}, 0xffff0000, v{b+i}',
                      f'v_pk_add_f32 v[{vSs+2*i}:{vSs+2*i+1}], v[{vSs+2*i}:{vSs+2*i+1}], v[{vX+2*(i%4)}:{vX+2*(i%4)+1}]']
    P += [Ins('', need=['red']), 's_barrier']
    for j in range(3):
        for t in range(5):
            P.append(Ins(f'ds_read_b128 {vr((t*4+j)*4)}, v{vRr} offset:{j*5120+t*1024}', ldsr=('red', 'red', True)))
    for t in range(5):
        f = (t * 4 + 3) * 4
        for j in range(3):
            o = (t * 4 + j) * 4
            P += [f'v_pk_add_f32 v[{f+2*i}:{f+2*i+1}], v[{f+2*i}:{f+2*i+1}], v[{o+2*i}:{o+2*i+1}]' for i in range(2)]
        e = t * 16
        P += [f'v_mul_f32 v{e+i}, {fbits(-math.log2(math.e))}, v{f+i}' for i in range(4)]
        P += [f'v_exp_f32 v{e+i}, v{e+i}' for i in range(4)]
        P += [f'v_mul_f32 v{f+i}, v{f+i}, v{vSs+4*t+i}' for i in range(4)]
        P += [f'v_add_f32 v{e+i}, 1.0, v{e+i}' for i in range(4)]
        P += [f'v_rcp_f32 v{e+i}, v{e+i}' for i in range(4)]
        for i in range(2):
            P += [f'v_lshlrev_b32 v{e+4+2*i}, 16, v{160+2*t+i}', f'v_and_b32 v{e+5+2*i}, 0xffff0000, v{160+2*t+i}']
        P += [f'v_fma_f32 v{f+i}, v{f+i}, v{e+i}, v{e+4+i}' for i in range(4)]
        P += [f'v_cvt_pk_bf16_f32 v{e+8}, v{f}, v{f+1}', f'v_cvt_pk_bf16_f32 v{e+9}, v{f+2}, v{f+3}']
        P.append(f'buffer_store_dwordx2 {vr(e+8, 2)}, v{vXo}, {sr(sOUT)}, s{sOx} offen{off(32*t)}')
    st.plain(*P)
    T(st, 'epi')
    if stamps: st.plain('s_waitcnt vmcnt(0)')
    T(st, 'drain')
    st.plain(*T.dump(sWS, sW, 3), 'L_k3_end:\ns_endpgm')
    if stamps: print('STAMPS', T.names)
    k = Kernel(name, st.segments())
    lines = k.finalize(); k.gap_report()
    return kernel_text(name, lines), kernel_desc(name), f'; @launch kernel={name} grid=(256,1,1) block=(256,1,1) lds=163840'

def assemble(parts):
    head = open('recurrent_scan__sliding_block_cached__swiglu_ffn__prompt.s.ref').read().split('\n')
    hd = [l for l in head if l.startswith(';') and '@launch' not in l and 'Override' not in l and 'grid=ceil' not in l]
    out = '\n'.join(hd) + '\n' + '\n'.join(p[2] for p in parts) + '\n.amdgcn_target "amdgcn-amd-amdhsa--gfx950"\n'
    out += ''.join(p[0] for p in parts) + ''.join(p[1] for p in parts)
    return out

if __name__ == '__main__':
    parts = [gen_k0(), gen_k1(), gen_k2(), gen_k3()]
    open('v1.s', 'w').write(assemble(parts))
    parts = [gen_k0(), gen_k1(stamps=True), gen_k2(stamps=True), gen_k3(stamps=True)]
    open('v1t.s', 'w').write(assemble(parts))
```
